```python
import torch

def _softmax(x, axis=-1):
    return torch.softmax(x, dim=axis)
def _gelu(x):
    return torch.nn.functional.gelu(x, approximate="tanh")
def _silu(x):
    return torch.nn.functional.silu(x)
def _sigmoid(x):
    return torch.sigmoid(x)
def _layernorm(x, axis=-1, eps=1e-5):
    m = x.mean(dim=axis, keepdim=True)
    v = x.var(dim=axis, keepdim=True, unbiased=False)
    return (x - m) / torch.sqrt(v + eps)
def _scatter_add(tgt, idx, src, axis=0):
    return tgt.clone().index_add_(axis, idx, src)
def _segment_sum(src, seg, n):
    out = torch.zeros((n,) + src.shape[1:], dtype=src.dtype)
    return out.index_add_(0, seg, src)
def _pad(x, pw):
    flat = tuple(v for pair in reversed(pw) for v in pair)
    return torch.nn.functional.pad(x, flat)

kernel_name = 'gated_mix__ssm_conv_s4d__mixer_channel_mlp__prompt'

def setup_inputs():

    _w = (lambda a: (lambda t: t.to(torch.bfloat16) if t.is_floating_point() else t)(torch.as_tensor(a)))
    def _A_setup():
        Bsz, L, D, N = 1, 2048, 640, 128
        return {
            "u": _w((lambda *s: torch.randn(*s, dtype=torch.bfloat16) * 0.05)(Bsz, L, D)),
            "log_A_real": _w((lambda *s: torch.randn(*s, dtype=torch.bfloat16) * 3.2)(D, N) * 0.5),
            "A_imag": _w((lambda *s: torch.randn(*s, dtype=torch.bfloat16) * 0.1)(D, N) * 3.14),
            "C_real": _w((lambda *s: torch.randn(*s, dtype=torch.bfloat16) * 0.8)(D, N) / N ** 0.5),
            "C_imag": _w((lambda *s: torch.randn(*s, dtype=torch.bfloat16) * 0.8)(D, N) / N ** 0.5),
            "log_dt": _w((lambda *s: torch.randn(*s, dtype=torch.bfloat16) * 0.1)(D) * 0.5 - 4.0),
            "D_skip": _w((lambda *s: torch.randn(*s, dtype=torch.bfloat16) * 0.1)(D)),
        }
    _A_in = _A_setup()

    def _B_setup():
        B, S, D, F = 1, 2048, 640, 1728
        return {
            "x": _w((lambda *s: torch.randn(*s, dtype=torch.bfloat16) * 0.05)(B, S, D)),
            "w1": _w((lambda *s: torch.randn(*s, dtype=torch.bfloat16) * 0.8)(D, F) * (D ** -0.5)),
            "b1": _w((lambda *s: torch.randn(*s, dtype=torch.bfloat16) * 0.4)(F)),
            "w2": _w((lambda *s: torch.randn(*s, dtype=torch.bfloat16) * 0.05)(F, D) * (F ** -0.5)),
            "b2": _w((lambda *s: torch.randn(*s, dtype=torch.bfloat16) * 0.05)(D)),
        }
    _B_in = _B_setup()

    return {
        "A_u": _A_in["u"],
        "A_log_A_real": _A_in["log_A_real"],
        "A_A_imag": _A_in["A_imag"],
        "A_C_real": _A_in["C_real"],
        "A_C_imag": _A_in["C_imag"],
        "A_log_dt": _A_in["log_dt"],
        "A_D_skip": _A_in["D_skip"],
        "B_x": _B_in["x"],
        "B_w1": _B_in["w1"],
        "B_b1": _B_in["b1"],
        "B_w2": _B_in["w2"],
        "B_b2": _B_in["b2"],
        "gate_w": _w((lambda *s: torch.randn(*s, dtype=torch.bfloat16) * 0.05)(640) * 16.0),
    }

def reference(A_u, A_log_A_real, A_A_imag, A_C_real, A_C_imag, A_log_dt, A_D_skip, B_x, B_w1, B_b1, B_w2, B_b2, gate_w):
    def _A_ref(u, log_A_real, A_imag, C_real, C_imag, log_dt, D_skip):
        L = u.shape[1]
        dt = torch.exp(log_dt)
        A = -torch.exp(log_A_real) + 1j * A_imag
        C = (C_real + 1j * C_imag) * dt[:, None]
        pos = (lambda x, dt: x.to(dt))(torch.arange(L), log_dt.dtype)
        P = torch.exp((A * dt[:, None])[:, :, None] * pos[None, None, :])
        K = 2.0 * torch.einsum("dn,dnl->dl", C, P).real
        L2 = 2 * L
        u_t = (lambda x, *d: x.permute(*d))(u, 0, 2, 1)
        Kf = (lambda x, *a, **k: torch.fft.rfft(x.float(), *a, **k))(K, L2)
        Uf = (lambda x, *a, **k: torch.fft.rfft(x.float(), *a, **k))(u_t, L2)
        y = (lambda x, *a, **k: torch.fft.irfft(x, *a, **k).to(torch.bfloat16))(Uf * Kf[None, :, :], L2)[:, :, :L]
        y = (lambda x, *d: x.permute(*d))(y, 0, 2, 1)
        return y + u * D_skip[None, None, :]

    def _B_ref(x, w1, b1, w2, b2):
        y = _layernorm(x, axis=-1)
        h = _gelu(torch.einsum("bsd,df->bsf", y, w1) + b1)
        return torch.einsum("bsf,fd->bsd", h, w2) + b2

    x = A_u
    g = _sigmoid((x * gate_w).sum(-1, keepdims=True))
    a = _A_ref(x, A_log_A_real, A_A_imag, A_C_real, A_C_imag, A_log_dt, A_D_skip)
    b = _B_ref(x, B_w1, B_b1, B_w2, B_b2)
    return g * a + (1 - g) * b
```

```python
import re
TRANS = ("v_exp_f32","v_log_f32","v_rcp_f32","v_rsq_f32","v_sqrt_f32","v_sin_f32","v_cos_f32")
def regs_of(tok):
    tok = tok.strip().lstrip('-').strip('|')
    m = re.fullmatch(r'([vas])(\d+)', tok)
    if m: return [(m.group(1), int(m.group(2)))]
    m = re.fullmatch(r'([vas])\[(\d+):(\d+)\]', tok)
    if m: return [(m.group(1), i) for i in range(int(m.group(2)), int(m.group(3))+1)]
    if tok == 'vcc': return [('s','vcc')]
    if tok == 'm0': return [('s','m0')]
    if tok == 'exec': return [('s','exec')]
    return []
class I:
    def __init__(s, t):
        s.t = t
        t = t.split(';')[0].strip()
        s.label = t.endswith(':')
        p = t.split(None, 1)
        s.op = p[0] if p else ''
        ops = []
        if len(p) > 1:
            for i, o in enumerate(p[1].split(',')):
                o = o.strip()
                ops.append(o.split()[0] if o else '')
        op = s.op
        s.mfma = op.startswith('v_mfma')
        s.valu = op.startswith('v_') and not s.mfma
        s.trans = op.replace('_e32','').replace('_e64','') in TRANS
        s.vmem = op.startswith('buffer_') or op.startswith('global_')
        s.ds = op.startswith('ds_')
        s.salu = op.startswith('s_')
        s.dpp = ('row_' in t or 'quad_perm' in t)
        s.lds_dma = s.vmem and (t.endswith(' lds') or ' lds ' in t)
        s.store = s.vmem and 'store' in op
        R = [regs_of(o) for o in ops]
        flat = lambda L: [x for l in L for x in l]
        s.d, s.u = [], []
        if s.mfma:
            s.d = R[0]; s.u = flat(R[1:]); s.ab = flat(R[1:3]); s.c = R[3]
            s.lat = 12 if '32x32' in op else 8
        elif s.valu:
            if 'swap' in op: s.d = flat(R); s.u = flat(R)
            else:
                s.d = R[0]; s.u = flat(R[1:])
                if 'fmac' in op or s.dpp or 'dot2c' in op: s.u = s.u + R[0]
                if op.startswith('v_cndmask') and len(ops) == 3: s.u = s.u + [('s','vcc')]
        elif s.vmem:
            if s.store or s.lds_dma or ('atomic' in op): s.u = flat(R)
            else: s.d = R[0]; s.u = flat(R[1:])
            s.wide = []
            if s.store and ('x4' in op or 'x3' in op):
                s.wide = R[0] if op.startswith('buffer_') else R[1]
        elif s.ds:
            if 'read' in op or 'bpermute' in op or 'swizzle' in op: s.d = R[0]; s.u = flat(R[1:])
            else: s.u = flat(R)
        elif s.salu and ops and not op.startswith('s_cmp') and not op.startswith('s_cbranch') and op not in ('s_waitcnt','s_nop','s_branch','s_barrier','s_setprio','s_endpgm'):
            s.d = R[0]; s.u = flat(R[1:])
        s.states = (int(ops[0]) + 1) if op == 's_nop' else (0 if (s.label or not op or op.startswith('.')) else 1)
def need(p, c):
    n = 0
    pd = set(p.d)
    if p.valu:
        vd = {r for r in pd if r[0] != 's'}; sd = pd - vd
        if c.mfma and vd & set(c.u): n = max(n, 2)
        if c.valu:
            if p.trans and not c.trans and vd & set(c.u): n = max(n, 1)
            if (c.dpp or 'permlane' in c.op) and vd & set(c.u): n = max(n, 2)
            if ('readfirstlane' in c.op or 'readlane' in c.op) and vd & set(c.u): n = max(n, 1)
            if sd & set(c.u): n = max(n, 2)
        if c.vmem and sd & set(c.u): n = max(n, 5)
    if p.mfma:
        if c.mfma:
            if pd & set(c.ab): n = max(n, p.lat)
            elif pd & set(c.c) and (p.d != c.c): n = max(n, p.lat)
            elif pd & set(c.d) and (p.d != c.c): n = max(n, p.lat)
        elif (c.valu or c.vmem or c.ds) and pd & (set(c.u) | set(c.d)): n = max(n, p.lat)
        if c.valu and set(p.c) & set(c.d): n = max(n, p.lat)
    if p.salu and ('s','m0') in pd and c.lds_dma: n = max(n, 1)
    if p.vmem and p.store and p.wide and (c.valu or c.mfma) and set(p.wide) & set(c.d): n = max(n, 2)
    return n
def pad(lines):
    out = []; hist = []
    for t in lines:
        c = I(t)
        if c.states and c.op != 's_nop':
            dist = 0; req = 0
            for p in reversed(hist):
                if dist >= 12: break
                req = max(req, need(p, c) - dist)
                dist += p.states
            if req > 0:
                nop = I('s_nop %d' % (req-1)); out.append(nop.t); hist.append(nop)
        out.append(t); hist.append(c)
        if c.op in ('s_branch','s_endpgm'): hist = []
        hist = hist[-16:]
    return out
class Asm:
    def __init__(s): s.l = []; s.vm = []; s.lg = []
    def __call__(s, txt, tag=None):
        L = txt if isinstance(txt, list) else txt.strip().split('\n')
        for t in L:
            if isinstance(t, tuple):
                if t[0] == 'WV': s.wv(t[1]); continue
                if t[0] == 'WL': s.wl(t[1]); continue
                t, tg = t
            else: tg = tag
            t = t.strip()
            if not t: continue
            s.l.append(t)
            if t.startswith('buffer_') or t.startswith('global_'): s.vm.append(tg)
            if t.startswith('ds_'): s.lg.append(tg)
            m = re.search(r'vmcnt\((\d+)\)', t)
            if m: n = int(m.group(1)); s.vm = s.vm[len(s.vm)-n:] if n and n < len(s.vm) else ([] if n == 0 else s.vm)
            m = re.search(r'lgkmcnt\((\d+)\)', t)
            if m: n = int(m.group(1)); s.lg = s.lg[len(s.lg)-n:] if n and n < len(s.lg) else ([] if n == 0 else s.lg)
    def _w(s, q, tag, name, mx):
        tags = tag if isinstance(tag, (list, set)) else [tag]
        idx = [i for i, x in enumerate(q) if x in tags]
        if not idx: return
        n = min(len(q) - 1 - idx[-1], mx)
        s('s_waitcnt %s(%d)' % (name, n))
    def wv(s, tag): s._w(s.vm, tag, 'vmcnt', 63)
    def wl(s, tag): s._w(s.lg, tag, 'lgkmcnt', 15)
    def text(s): return '\n'.join(('' if t.endswith(':') else '    ') + t for t in pad(s.l)) + '\n'
def mix(main, fill, start=0, end=None):
    end = len(main) if end is None else end
    out = []; n = end - start; k = 0
    for i, m in enumerate(main):
        out.append(m)
        if start <= i < end:
            want = ((i - start + 1) * len(fill) + n - 1) // n
            while k < want:
                f = fill[k]; k += 1
                out += f if isinstance(f, list) else [f]
    return out
def vr(b, n=1, p='v'): return '%s%d' % (p, b) if n == 1 else '%s[%d:%d]' % (p, b, b+n-1)
```

```python
import sys, struct
from asmlib import *
KN = "gated_mix__ssm_conv_s4d__mixer_channel_mlp__prompt_kernel"
HF, YF, SF, UF, WF = 0, 4096, 8192, 12288, 15360
STATS, UT, W2P, HOFF, YOFF, TSOFF = 0x10000, 0x20000, 0x300000, 0x600000, 0xD00000, 0xFA0000
WSREC = 0x1000000
AUXB = 98304
f2u = lambda x: '0x%08x' % struct.unpack('<I', struct.pack('<f', x))[0]
X, W1S, WS, S4 = 's[36:39]', 's[40:43]', 's[44:47]', 's[48:51]'
XCD, J, RBL, S8, RB, HALF, FSLOT, SLOT16, CH, SOX, SOW, W4, TB, CB = ['s%d' % i for i in range(52, 66)]
T0, T1, T2, T3, T4, T5 = ['s%d' % i for i in range(66, 72)]
KS0 = 72
LIMIT = 40000

class G:
    def __init__(g, **o):
        g.o = dict(ts=False, nbar_seg=105)
        g.o.update(o); g.a = Asm(); g.nl = 0
    def lab(g, n):
        g.nl += 1; return 'L_%s_%d' % (n, g.nl)
    def ts(g, i):
        if g.o['ts']: g.a('s_memtime s[%d:%d]' % (86+2*i, 87+2*i))
    def ts_out(g):
        if not g.o['ts']: return
        a = g.a
        g.ts(7)
        a('s_waitcnt vmcnt(0) lgkmcnt(0)')
        for i in range(8): a('v_mov_b32 v%d, s%d' % (i, 86+2*i))
        a(f'''s_lshl_b32 {T0}, s2, 3
        s_add_u32 {T0}, {T0}, s3
        s_lshl_b32 {T0}, {T0}, 5
        s_add_u32 {T0}, {T0}, {TSOFF}
        v_mov_b32 v8, 0
        buffer_store_dwordx4 v[0:3], v8, {WS}, {T0} offen
        buffer_store_dwordx4 v[4:7], v8, {WS}, {T0} offen offset:16''')
    def srd(g, d, p, n):
        g.a(f's_mov_b32 s{d}, s{p}\ns_mov_b32 s{d+1}, s{p+1}\ns_mov_b32 s{d+2}, {n}\ns_mov_b32 s{d+3}, 0x20000')
    def flag_ld(g, vt, voff, tag=None, x2=False):
        g.a(f'buffer_load_dword{"x2" if x2 else ""} {vr(vt, 2 if x2 else 1)}, v{voff}, {WS}, 0 offen sc0 sc1', tag)
    def dbg_ld(g, vt, vz, tag=None):
        g.a(f'global_load_dword v{vt}, v{vz}, s[32:33] sc0 sc1', tag)
    def check(g, vt, reload, x2=False):
        a = g.a; L = g.lab('poll'); D = g.lab('ok')
        sv = (list(a.vm), list(a.lg))
        a(f's_mov_b32 {T5}, {LIMIT}\n{L}:')
        if x2: a(f'v_and_b32 v{vt}, v{vt}, v{vt+1}')
        a(f'v_cmp_ne_u32 vcc, 1, v{vt}\ns_cbranch_vccz {D}')
        reload()
        a(f's_sub_u32 {T5}, {T5}, 1\ns_waitcnt vmcnt(0)\ns_cbranch_scc0 {L}\n{D}:')
        a.vm, a.lg = sv
    def set_flag(g, vt, vo, soff, imm=0):
        g.a(f'v_mov_b32 v{vt}, 1\nv_mov_b32 v{vo}, 0\ns_mov_b64 exec, 1\nbuffer_store_dword v{vt}, v{vo}, {WS}, {soff} offen offset:{imm} sc0 sc1\ns_mov_b64 exec, -1')

    def prologue(g):
        a = g.a
        a(f'''s_cmp_ge_u32 s2, 256
        s_cbranch_scc1 L_end
        s_load_dwordx16 s[4:19], s[0:1], 0
        s_load_dwordx16 s[20:35], s[0:1], 64''')
        g.ts(0)
        a(f'''v_lshrrev_b32 v1, 6, v0
        v_and_b32 v127, 63, v0
        v_readfirstlane_b32 s3, v1
        s_and_b32 {XCD}, s2, 7
        s_lshr_b32 {J}, s2, 3
        s_and_b32 {RBL}, {J}, 3
        s_lshr_b32 {S8}, {J}, 2
        s_lshr_b32 {RB}, {XCD}, 1
        s_lshl_b32 {RB}, {RB}, 2
        s_add_u32 {RB}, {RB}, {RBL}
        s_and_b32 {HALF}, {XCD}, 1
        s_mul_i32 {FSLOT}, {HALF}, 7
        s_add_u32 {FSLOT}, {FSLOT}, {S8}
        s_add_u32 {SLOT16}, {FSLOT}, {HALF}
        s_mul_i32 {CH}, {RBL}, 3
        s_add_u32 {CH}, {CH}, {FSLOT}
        s_cmp_ge_u32 {CH}, 20
        s_cselect_b32 {T0}, 10, 0
        s_sub_u32 {CH}, {CH}, {T0}
        s_cmp_ge_u32 {CH}, 10
        s_cselect_b32 {T0}, 10, 0
        s_sub_u32 {CH}, {CH}, {T0}
        s_lshl_b32 {TB}, {XCD}, 2
        s_add_u32 {TB}, {TB}, {RBL}
        s_mov_b32 {CB}, {S8}
        s_and_b32 {W4}, s3, 3
        s_cmp_ge_u32 s3, 4
        s_cbranch_scc1 L_aux''')

    def gemm1(g):
        a = g.a
        L = 127
        XB, WB, DX, DW, ONE = 80, 82, 86, 90, 96
        B1, ST = 100, 108
        t0, t1, t2, t3 = 116, 117, 118, 119
        a(f's_setprio 3\ns_cmp_eq_u32 {S8}, 7\ns_cbranch_scc1 L_free')
        a(f'''s_lshl_b32 {T0}, {RB}, 7
        s_lshl_b32 {T1}, {W4}, 5
        s_add_u32 {T0}, {T0}, {T1}
        v_lshrrev_b32 v{t0}, 3, v{L}
        v_add_u32 v{t0}, {T0}, v{t0}
        v_mul_u32_u24 v{t0}, 1280, v{t0}
        v_lshrrev_b32 v{t1}, 4, v{L}
        v_and_b32 v{t2}, 7, v{L}
        v_xor_b32 v{t2}, v{t2}, v{t1}
        v_lshl_add_u32 v{DX}, v{t2}, 4, v{t0}
        v_xor_b32 v{DX+1}, 64, v{DX}
        v_add_u32 v{DX+1}, {8*1280-1024}, v{DX+1}
        v_add_u32 v{DX+2}, {16*1280-2048}, v{DX}
        v_add_u32 v{DX+3}, {16*1280-2048}, v{DX+1}
        s_lshl_b32 {T0}, {W4}, 4
        v_add_u32 v{t0}, {T0}, v{t1}
        v_mul_u32_u24 v{t0}, 3456, v{t0}
        s_lshl_b32 {T0}, {FSLOT}, 8
        v_add_u32 v{t0}, {T0}, v{t0}
        s_cmp_eq_u32 {FSLOT}, 13
        s_cselect_b32 {T1}, 7, 15
        v_lshlrev_b32 v{t2}, 1, v{t1}
        v_xor_b32 v{t2}, v{t2}, v{L}
        v_xor_b32 v{t3}, 8, v{t2}
        v_and_b32 v{t2}, {T1}, v{t2}
        v_and_b32 v{t3}, {T1}, v{t3}
        v_lshl_add_u32 v{DW}, v{t2}, 4, v{t0}
        v_lshl_add_u32 v{DW+2}, v{t3}, 4, v{t0}
        v_add_u32 v{DW+1}, {4*3456-1024}, v{DW}
        v_add_u32 v{DW+3}, {12*3456-3072}, v{DW+2}
        v_add_u32 v{DW+2}, {8*3456-2048}, v{DW+2}
        s_lshl_b32 {T2}, {W4}, 12
        s_waitcnt lgkmcnt(0)''')
        g.srd(36, 4, 2048*1280); g.srd(40, 20, 640*3456)
        def dma(s):
            st = s % 3
            o = [[f's_lshl_b32 {SOX}, {CH}, 7', f's_add_u32 m0, {T2}, {st*16384}', f's_mul_i32 {SOW}, {CH}, 221184',
                  (f'buffer_load_dwordx4 v{DX}, {X}, {SOX} offen lds', 'd%d' % s)]]
            for q in range(1, 4): o.append([(f'buffer_load_dwordx4 v{DX+q}, {X}, {SOX} offen offset:{1024*q} lds', 'd%d' % s)])
            o.append([f's_add_u32 m0, {T2}, {49152+st*16384}', f's_add_u32 {CH}, {CH}, 1',
                  (f'buffer_load_dwordx4 v{DW}, {W1S}, {SOW} offen lds', 'd%d' % s), f's_cmp_eq_u32 {CH}, 10', f's_cselect_b32 {CH}, 0, {CH}'])
            for q in range(1, 4): o.append([(f'buffer_load_dwordx4 v{DW+q}, {W1S}, {SOW} offen offset:{1024*q} lds', 'd%d' % s)])
            return o
        for s in (0, 1):
            for grp in dma(s): a(grp)
        g.srd(44, 34, WSREC); g.srd(48, 22, 3456)
        a(f'''s_and_b32 {T0}, {W4}, 1
        s_lshr_b32 {T1}, {W4}, 1
        v_and_b32 v{t0}, 15, v{L}
        v_lshrrev_b32 v{t2}, 1, v{t0}
        v_xor_b32 v{t2}, v{t2}, v{t1}
        v_lshlrev_b32 v{t2}, 4, v{t2}
        v_lshl_add_u32 v{t2}, v{t0}, 7, v{t2}
        s_lshl_b32 {T3}, {T0}, 13
        v_add_u32 v{XB}, {T3}, v{t2}
        v_xor_b32 v{XB+1}, 64, v{XB}
        v_bfe_u32 v{t0}, v{L}, 2, 2
        v_and_b32 v{t2}, 1, v{t1}
        v_lshl_add_u32 v{t2}, v{t2}, 2, v{t0}
        s_lshl_b32 {T3}, {T1}, 2
        s_lshl_b32 {T4}, {T0}, 1
        s_add_u32 {T3}, {T3}, {T4}
        v_xor_b32 v{t2}, {T3}, v{t2}
        v_lshl_add_u32 v{t0}, v{t1}, 3, v{t0}
        v_lshlrev_b32 v{t0}, 8, v{t0}
        v_lshl_add_u32 v{t0}, v{t2}, 5, v{t0}
        v_and_b32 v{t2}, 3, v{L}
        v_lshl_add_u32 v{t0}, v{t2}, 3, v{t0}
        v_add_u32 v{WB}, 49152, v{t0}
        v_xor_b32 v{WB+1}, 32, v{WB}
        v_xor_b32 v{WB+2}, 64, v{WB}
        v_xor_b32 v{WB+3}, 96, v{WB}
        s_lshl_b32 {T4}, {FSLOT}, 3
        s_add_u32 {T3}, {T3}, {T4}
        s_lshl_b32 {T3}, {T3}, 5
        v_lshlrev_b32 v{t0}, 3, v{t1}
        v_add_u32 v{t0}, {T3}, v{t0}
        v_xor_b32 v{t2}, 64, v{t0}
        v_mov_b32 v{t3}, 0''')
        for i in range(4): a(f'v_mov_b32 v{ONE+i}, 0x3f803f80')
        def reads(s, ks):
            st = s % 3; fb = 32*ks; o = []
            for u in range(4):
                o.append((f'ds_read_b128 a[{fb+16+4*u}:{fb+19+4*u}], v{XB+ks} offset:{st*16384+2048*u}', 'r'))
                for e in range(2):
                    o.append((f'ds_read_b64_tr_b16 a[{fb+4*u+2*e}:{fb+4*u+2*e+1}], v{WB+u} offset:{st*16384+ks*8192+e*1024}', 'r'))
            return o
        def mm(ks, first):
            fb = 32*ks; o = []
            for u in range(4):
                for tt in range(4):
                    d = vr((u*4+tt)*4, 4)
                    o.append(f'v_mfma_f32_16x16x32_bf16 {d}, a[{fb+4*u}:{fb+4*u+3}], a[{fb+16+4*tt}:{fb+19+4*tt}], {"0" if first else d}')
                if u < 2:
                    d = vr(64+4*u, 4)
                    o.append(f'v_mfma_f32_16x16x32_bf16 {d}, a[{fb+4*u}:{fb+4*u+3}], v[{ONE}:{ONE+3}], {"0" if first else d}')
            return o
        for s in range(10):
            a.wv('d%d' % s)
            a('s_waitcnt lgkmcnt(0)\ns_barrier')
            if s == 0: g.ts(1)
            pre = []
            if s == 1:
                pre = [(f'buffer_load_dwordx2 v[{B1+2*u}:{B1+2*u+1}], v{t0 if u < 2 else t2}, {S4}, 0 offen offset:{32*(u&1)}', 'b1') for u in range(4)]
            if s == 4: g.dbg_ld(120, t3, 'dbg')
            if s == 6:
                g.check(120, lambda: g.dbg_ld(120, t3))
                a(f'''s_lshl_b32 {T3}, {RB}, 8
                s_add_u32 {T3}, {T3}, {SF}
                v_lshl_add_u32 v121, v{L}, 2, {T3}''')
            if s == 7: g.flag_ld(120, 121, 'sf')
            if s == 9:
                g.check(120, lambda: g.flag_ld(120, 121))
                a(f'''s_lshl_b32 {T3}, {RB}, 1
                s_add_u32 {T3}, {T3}, {T0}
                s_lshl_b32 {T3}, {T3}, 10
                s_add_u32 {T3}, {T3}, {STATS}
                v_and_b32 v{t0}, 15, v{L}
                v_lshlrev_b32 v{t0}, 4, v{t0}''')
                pre = [(f'buffer_load_dwordx2 v[{ST+2*tt}:{ST+2*tt+1}], v{t0}, {WS}, {T3} offen offset:{256*tt} sc1', 'st') for tt in range(4)]
            a(pre)
            d = dma(s+2) if s+2 < 10 else []
            if s == 0:
                a(reads(0, 0))
                for grp in d: a(grp)
            else:
                a(mix(mix(mm(1, False), d, 9, 18), reads(s, 0), 0, 9))
            a('s_waitcnt lgkmcnt(0)')
            a(mix(mm(0, s == 0), reads(s, 1), 0, 12))
        a('s_waitcnt lgkmcnt(0)')
        m = mm(1, False)
        a(m[:10])
        a(f'''s_lshl_b32 {T3}, {W4}, 11
        s_add_u32 {T3}, {T3}, 81920
        v_lshl_add_u32 v{t0}, v{L}, 4, {T3}
        v_xor_b32 v{t2}, 2048, v{t0}''')
        a(m[10:])
        a(f'''ds_write_b128 v{t0}, v[64:67]
        ds_write_b128 v{t0}, v[68:71] offset:1024
        s_waitcnt lgkmcnt(0)
        s_barrier
        ds_read_b128 v[72:75], v{t2}
        ds_read_b128 v[76:79], v{t2} offset:1024''')
        g.ts(2)
        a(f'''s_lshl_b32 {T3}, {RB}, 1
        s_add_u32 {T3}, {T3}, {T0}
        s_mul_i32 {T4}, {T3}, 54
        s_lshl_b32 {SOX}, {FSLOT}, 1
        s_add_u32 {SOX}, {SOX}, {T1}
        s_lshl_b32 {T3}, {T3}, 5
        s_add_u32 {SOW}, {T3}, {SOX}
        s_lshl_b32 {SOW}, {SOW}, 2
        s_cmp_ge_u32 {SOX}, 27
        s_cbranch_scc1 L_pre2
        s_lshl_b32 {SOX}, {SOX}, 1
        s_add_u32 {T4}, {T4}, {SOX}
        s_add_u32 {T3}, {T4}, {T0}
        s_xor_b32 {T0}, {T0}, 1
        s_add_u32 {T4}, {T4}, {T0}
        s_lshl_b32 {T3}, {T3}, 12
        s_lshl_b32 {T4}, {T4}, 12
        s_add_u32 {T3}, {T3}, {HOFF}
        s_add_u32 {T4}, {T4}, {HOFF}
        v_lshlrev_b32 v{t0}, 4, v{L}
        s_mov_b32 {T0}, {f2u(-2.302208198*0.044715)}
        v_mov_b32 v{t1}, {f2u(-2.302208198)}''')
        BF = 80
        a.wv('st')
        for u in range(4):
            for h in range(2):
                a(f'v_lshlrev_b32 v{BF+4*u+2*h}, 16, v{B1+2*u+h}\nv_and_b32 v{BF+4*u+2*h+1}, 0xffff0000, v{B1+2*u+h}')
        a('s_waitcnt lgkmcnt(0)')
        E = 96
        k = 0
        for p in range(2):
            for tt in range(4):
                out = 104 if k % 2 == 0 else 120; k += 1
                R = [((2*p+h)*4+tt)*4+i for h in range(2) for i in range(4)]
                C = [64+4*(2*p+h)+i for h in range(2) for i in range(4)]
                Bq = [BF+4*(2*p+h)+i for h in range(2) for i in range(4)]
                for i in range(8): a(f'v_fma_f32 v{R[i]}, -v{ST+2*tt}, v{C[i]}, v{R[i]}')
                for i in range(8): a(f'v_fma_f32 v{R[i]}, v{R[i]}, v{ST+2*tt+1}, v{Bq[i]}')
                for i in range(8): a(f'v_mul_f32 v{E+i}, v{R[i]}, v{R[i]}')
                for i in range(8): a(f'v_fma_f32 v{E+i}, v{E+i}, {T0}, v{t1}')
                for i in range(8): a(f'v_mul_f32 v{E+i}, v{E+i}, v{R[i]}')
                for i in range(8): a(f'v_exp_f32 v{E+i}, v{E+i}')
                for i in range(8): a(f'v_add_f32 v{E+i}, 1.0, v{E+i}')
                for i in range(8): a(f'v_rcp_f32 v{E+i}, v{E+i}')
                for i in range(8): a(f'v_mul_f32 v{E+i}, v{E+i}, v{R[i]}')
                for i in range(4): a(f'v_cvt_pk_bf16_f32 v{out+i}, v{E+2*i}, v{E+2*i+1}')
                a(f'buffer_store_dwordx4 v[{out}:{out+3}], v{t0}, {WS}, {T3 if p == 0 else T4} offen offset:{1024*tt} sc1', 'h')
        g.ts(3)
        a('s_waitcnt vmcnt(0)')
        g.set_flag(96, 97, SOW, HF)

    def gemm2(g):
        a = g.a; L = 127
        a('L_pre2:')
        a.vm = []; a.lg = []
        HV, WV, WL = 120, 124, 126
        a(f'''s_lshr_b32 {T0}, {CB}, 1
        s_lshl_b32 {T0}, {T0}, 8
        s_add_u32 {T0}, {T0}, {WF}
        v_min_u32 v81, 53, v{L}
        v_lshl_add_u32 v81, v81, 2, {T0}''')
        g.flag_ld(80, 81, 'wf')
        a(f'''s_mul_i32 {T0}, {W4}, 14
        s_cmp_eq_u32 {W4}, 3
        s_cselect_b32 {T0}, 41, {T0}
        s_cmp_ge_u32 {W4}, 2
        s_cselect_b32 {T1}, 13, 14
        s_add_u32 {T1}, {T1}, {T0}
        s_mul_i32 {T2}, {CB}, 3
        s_lshr_b32 {T2}, {T2}, 1
        s_add_u32 s{KS0}, {T0}, {T2}''')
        for j in range(1, 14):
            a(f's_add_u32 s{KS0+j}, s{KS0+j-1}, 1\ns_cmp_eq_u32 s{KS0+j}, {T1}\ns_cselect_b32 s{KS0+j}, {T0}, s{KS0+j}')
        a(f'''s_cmp_ge_u32 {W4}, 2
        s_cselect_b32 s{KS0+13}, 0x2000, s{KS0+13}
        s_mul_i32 {SOW}, {CB}, {54*5120}
        s_add_u32 {SOW}, {SOW}, {W2P}
        s_mul_i32 {SOX}, {TB}, {54*4096}
        s_add_u32 {SOX}, {SOX}, {HOFF}
        v_lshlrev_b32 v{WV}, 4, v{L}
        v_add_u32 v{WV+1}, 4096, v{WV}
        s_lshl_b32 {T0}, {W4}, 10
        v_add_u32 v{HV}, {T0}, v{WV}
        v_xor_b32 v{HV+1}, 1024, v{HV}
        v_xor_b32 v{HV+2}, 2048, v{HV}
        v_xor_b32 v{HV+3}, 3072, v{HV}
        s_mul_i32 {T2}, {W4}, 20480
        v_add_u32 v{WL}, {T2}, v{WV}
        s_mul_i32 {T0}, {CB}, 160
        v_lshrrev_b32 v82, 4, v{L}
        v_lshl_add_u32 v82, v82, 3, {T0}''')
        for ct in range(5): a(f'global_load_dwordx2 v[{84+2*ct}:{85+2*ct}], v82, s[26:27] offset:{32*ct}', 'b2')
        a.wv('wf')
        g.check(80, lambda: g.flag_ld(80, 81))
        WR = lambda r, ct: f'a[{20*r+4*ct}:{20*r+4*ct+3}]'
        def wload(j, r):
            o = []
            for ct in range(5):
                pre = [f's_mul_i32 {T3}, s{KS0+j}, 5120', f's_add_u32 {T3}, {T3}, {SOW}'] if ct == 0 else []
                o.append(pre + [(f'buffer_load_dwordx4 {WR(r, ct)}, v{WV+ct//4}, {WS}, {T3} offen offset:{1024*(ct%4)} sc1', 'w%d' % j)])
            return o
        def wdma(j):
            o = []
            for ct in range(5):
                pre = [f's_mul_i32 {T3}, s{KS0+j}, 5120', f's_add_u32 {T3}, {T3}, {SOW}'] if ct == 0 else []
                if ct % 4 == 0: pre = pre + [f's_add_u32 m0, {T2}, {(j-6)*5120+1024*ct}']
                o.append(pre + [(f'buffer_load_dwordx4 v{WV+ct//4}, {WS}, {T3} offen offset:{1024*(ct%4)} sc1 lds', 'w%d' % j)])
            return o
        for j in range(6):
            for grp in wload(j, j): a(grp)
        a.wv('b2')
        ACC = lambda u, ct: (u*5+ct)*4
        for ct in range(5):
            for h in range(2):
                a(f'v_lshlrev_b32 v{ACC(0,ct)+2*h}, 16, v{84+2*ct+h}\nv_and_b32 v{ACC(0,ct)+2*h+1}, 0xffff0000, v{84+2*ct+h}')
        for j in range(6, 10):
            for grp in wdma(j): a(grp)
        a(f'''s_lshl_b32 {T0}, {TB}, 7
        v_min_u32 v81, 26, v{L}
        v_lshl_add_u32 v81, v81, 2, {T0}''')
        g.flag_ld(80, 81, 'hf')
        a.wv('hf')
        g.ts(4)
        g.check(80, lambda: g.flag_ld(80, 81))
        g.ts(5)
        def HB(b, u):
            if b < 2: return vr(80+16*b+4*u, 4)
            return vr(112+4*u, 4) if u < 2 else vr(120+4*(u-2), 4, 'a')
        def hload(j, u):
            pre = [f's_lshl_b32 {T4}, s{KS0+j}, 12', f's_add_u32 {T4}, {T4}, {SOX}'] if u == 0 else []
            return pre + [(f'buffer_load_dwordx4 {HB(j%3, u)}, v{HV+u}, {WS}, {T4} offen sc1', 'h%d_%d' % (j, u))]
        for j in range(3):
            for u in range(4): a(hload(j, u))
        wreg = {j: j for j in range(6)}; wreg.update({6: 2, 7: 3, 8: 2, 9: 3, 10: 0, 11: 1, 12: 4, 13: 5})
        wstream = {3: 10, 5: 11, 7: 12, 9: 13}
        YB = 81920
        for j in range(14):
            fill = []
            if j in wstream: fill += wload(wstream[j], wreg[wstream[j]])
            if 6 <= j+1 <= 9:
                fill += [[(f'ds_read_b128 {WR(wreg[j+1], ct)}, v{WL} offset:{(j+1-6)*5120+1024*ct}', 'l%d' % (j+1))] for ct in range(5)]
            if j == 10:
                a(f'''s_lshl_b32 {T0}, {CB}, 9
                s_add_u32 {T0}, {T0}, {YF}
                v_min_u32 v{WL}, 39, v{L}
                v_lshl_add_u32 v{WL}, v{WL}, 3, {T0}''')
                g.flag_ld(WV, WL, 'yf', x2=True)
            if j == 12:
                a.wv('yf')
                g.check(WV, lambda: g.flag_ld(WV, WL, x2=True), x2=True)
                a(f'''s_mul_i32 {T0}, {CB}, 80
                s_mul_i32 {T1}, {W4}, 20
                s_add_u32 {T0}, {T0}, {T1}
                s_lshl_b32 {T0}, {T0}, 12
                s_lshl_b32 {T3}, {TB}, 7
                s_add_u32 {T0}, {T0}, {T3}
                s_add_u32 {T0}, {T0}, {YOFF}
                s_lshl_b32 {T1}, {T1}, 7
                s_add_u32 m0, {T1}, {YB}
                v_lshrrev_b32 v{HV}, 3, v{L}
                v_and_b32 v{HV+1}, 7, v{L}
                v_lshlrev_b32 v{HV}, 12, v{HV}
                v_lshl_add_u32 v{HV}, v{HV+1}, 4, v{HV}
                v_add_u32 v{HV+1}, {8*4096-1024}, v{HV}
                v_add_u32 v{HV+2}, {16*4096-2048}, v{HV}
                s_lshl_b32 {T1}, {TB}, 2
                s_add_u32 {T1}, {T1}, {W4}
                s_lshl_b32 {T1}, {T1}, 8
                s_add_u32 {T1}, {T1}, {STATS}
                v_and_b32 v{HV+3}, 15, v{L}
                v_lshlrev_b32 v{HV+3}, 4, v{HV+3}''')
                fill += [[(f'buffer_load_dwordx4 v{HV+q}, {WS}, {T0} offen offset:{1024*q} sc1 lds', 'y')] for q in range(3)]
                fill += [[(f'buffer_load_dword v{WV}, v{HV+3}, {WS}, {T1} offen offset:8 sc1', 'y')]]
            main = []
            for u in range(4):
                for ct in range(5):
                    grp = []
                    if ct == 0:
                        tags = ['h%d_%d' % (j, u)] + (['w%d' % j] if u == 0 else []) + (['w9'] if (j, u) == (5, 0) else [])
                        grp.append(('WV', tags))
                        if u == 0: grp.append(('WL', 'l%d' % j))
                    d = vr(ACC(u, ct), 4)
                    grp.append(f'v_mfma_f32_16x16x32_bf16 {d}, {WR(wreg[j], ct)}, {HB(j%3, u)}, {"0" if (j == 0 and u > 0) else d}')
                    if ct == 4 and j+3 < 14: grp += hload(j+3, u)
                    main.append(grp)
            for grp in mix(main, [[f] for f in fill], 1, 19): a(grp)
        g.ts(6)
        a(f'v_lshl_add_u32 v80, v{L}, 4, {T2}')
        for u in range(1, 4):
            for ct in range(5): a(f'ds_write_b128 v80, {vr(ACC(u,ct),4)} offset:{(u-1)*5120+1024*ct}')
        for u in range(1, 4):
            a(f's_xor_b32 {T0}, {W4}, {u}\ns_mul_i32 {T0}, {T0}, 20480\nv_lshl_add_u32 v{80+u}, v{L}, 4, {T0}')
        a(f'''v_lshrrev_b32 v84, 2, v{L}
        v_and_b32 v85, 3, v{L}
        v_lshlrev_b32 v84, 7, v84
        v_lshl_add_u32 v84, v85, 3, v84
        s_lshl_b32 {T0}, {W4}, 5
        s_add_u32 {T0}, {T0}, {YB}
        v_add_u32 v84, {T0}, v84
        s_lshl_b32 {T0}, {TB}, 2
        s_add_u32 {T0}, {T0}, {W4}
        s_mul_i32 {T0}, {T0}, {16*1280}
        s_mul_i32 {T1}, {CB}, 160
        s_add_u32 {T0}, {T0}, {T1}
        v_and_b32 v85, 15, v{L}
        v_mul_u32_u24 v85, 1280, v85
        v_lshrrev_b32 v86, 4, v{L}
        v_lshl_add_u32 v85, v86, 3, v85''')
        g.srd(48, 30, 2048*1280)
        a('s_waitcnt vmcnt(0) lgkmcnt(0)\ns_barrier')
        for ct in range(5):
            for u in range(1, 4): a(f'ds_read_b128 {vr(ACC(u,ct),4)}, v{80+u} offset:{(u-1)*5120+1024*ct}', 'p%d' % ct)
            a(f'ds_read_b64_tr_b16 v[{90+2*ct}:{91+2*ct}], v84 offset:{2048*ct}', 'p%d' % ct)
        for ct in range(5):
            a.wl('p%d' % ct)
            b = ACC(0, ct)
            for i in range(4): a(f'v_add_f32 v{b+i}, v{b+i}, v{ACC(1,ct)+i}\nv_add_f32 v{ACC(2,ct)+i}, v{ACC(2,ct)+i}, v{ACC(3,ct)+i}')
            for h in range(2): a(f'v_lshlrev_b32 v{100+2*h}, 16, v{90+2*ct+h}\nv_and_b32 v{101+2*h}, 0xffff0000, v{90+2*ct+h}')
            for i in range(4): a(f'v_add_f32 v{b+i}, v{b+i}, v{ACC(2,ct)+i}')
            for i in range(4): a(f'v_sub_f32 v{100+i}, v{100+i}, v{b+i}')
            for i in range(4): a(f'v_fmac_f32 v{b+i}, v{WV}, v{100+i}')
            a(f'v_cvt_pk_bf16_f32 v{b}, v{b}, v{b+1}\nv_cvt_pk_bf16_f32 v{b+1}, v{b+2}, v{b+3}')
            a(f'buffer_store_dwordx2 v[{b}:{b+1}], v85, {S4}, {T0} offen offset:{32*ct}')
        g.ts_out()
        a('s_endpgm')

    def w2prep(g):
        a = g.a; L = 127; D = g.lab('w2done')
        g.srd(40, 24, 1728*1280)
        a(f'''s_cmp_ge_u32 {TB}, 27
        s_cbranch_scc1 {D}
        s_lshr_b32 {T0}, s3, 2
        s_lshl_b32 {T1}, {TB}, 1
        s_add_u32 {T0}, {T0}, {T1}
        s_mul_i32 {T1}, {T0}, {32*1280}
        s_mul_i32 {T2}, {W4}, 320
        s_add_u32 {T1}, {T1}, {T2}
        s_mul_i32 {T2}, s3, 20480
        s_lshl_b32 {T3}, {W4}, 14
        s_add_u32 {T3}, {T3}, {AUXB}
        s_cmp_ge_u32 s3, 4
        s_cselect_b32 {T2}, {T3}, {T2}''')
        for q in range(10):
            a(f'''v_add_u32 v0, {64*q}, v{L}
            v_mul_u32_u24 v1, 3277, v0
            v_lshrrev_b32 v1, 16, v1
            v_mul_u32_u24 v1, {1280-320}, v1
            v_lshl_add_u32 v1, v0, 4, v1
            s_add_u32 m0, {T2}, {1024*q}
            buffer_load_dwordx4 v1, {W1S}, {T1} offen lds''')
        a(f'''v_mov_b32 v3, 0
        v_lshrrev_b32 v0, 2, v{L}
        v_mul_u32_u24 v0, 320, v0
        v_and_b32 v1, 3, v{L}
        v_lshl_add_u32 v0, v1, 3, v0
        v_add_u32 v0, {T2}, v0
        v_lshlrev_b32 v1, 4, v{L}
        v_add_u32 v2, 4096, v1
        s_mul_i32 {T3}, {W4}, {2*54*5120}
        s_mul_i32 {T4}, {T0}, 5120
        s_add_u32 {T3}, {T3}, {T4}
        s_add_u32 {T3}, {T3}, {W2P}
        s_add_u32 {T4}, {T3}, {54*5120}
        s_waitcnt vmcnt(0)''')
        for ct in range(10):
            for e in range(2): a(f'ds_read_b64_tr_b16 v[{8+4*ct+2*e}:{9+4*ct+2*e}], v0 offset:{32*ct+16*320*e}', 'c%d' % ct)
            if ct >= 3:
                c = ct-3; a.wl('c%d' % c)
                a(f'buffer_store_dwordx4 v[{8+4*c}:{11+4*c}], v{1+(c%5)//4}, {WS}, {T3 if c < 5 else T4} offen offset:{1024*((c%5)%4)} sc1')
        for c in range(7, 10):
            a.wl('c%d' % c)
            a(f'buffer_store_dwordx4 v[{8+4*c}:{11+4*c}], v{1+(c%5)//4}, {WS}, {T4} offen offset:{1024*((c%5)%4)} sc1')
        g.dbg_ld(4, 3)
        a('s_waitcnt vmcnt(0)')
        g.check(4, lambda: g.dbg_ld(4, 3))
        a(f's_lshl_b32 {T1}, {W4}, 6\ns_add_u32 {T1}, {T1}, {T0}\ns_lshl_b32 {T1}, {T1}, 2\ns_add_u32 {T1}, {T1}, {WF}')
        g.set_flag(4, 3, T1)
        a(f'{D}:')
    def free(g):
        a = g.a
        a('L_free:\ns_waitcnt lgkmcnt(0)')
        g.srd(44, 34, WSREC)
        g.w2prep()
        a('v_mov_b32 v3, 0')
        g.dbg_ld(4, 3)
        a('s_waitcnt vmcnt(0)')
        g.check(4, lambda: g.dbg_ld(4, 3))
        a('s_branch L_pre2')

    def stats_code(g):
        o = []
        A = o.append
        for i in range(10): A(f'v_lshlrev_b32 v{20+2*i}, 16, v{i}'); A(f'v_and_b32 v{21+2*i}, 0xffff0000, v{i}')
        A('v_add_f32 v0, v20, v21')
        for i in range(2, 20): A(f'v_add_f32 v0, v0, v{20+i}')
        A('v_mov_b32 v2, 0')
        for i in range(10):
            A(f'v_lshlrev_b32 v4, 16, v{10+i}'); A(f'v_and_b32 v5, 0xffff0000, v{10+i}')
            A(f'v_fmac_f32 v2, v4, v{20+2*i}'); A(f'v_fmac_f32 v2, v5, v{21+2*i}')
        def red(rs):
            for k in (8, 4, 2, 1):
                for r in rs: A(f'v_add_f32_dpp v{r}, v{r}, v{r} row_ror:{k} row_mask:0xf bank_mask:0xf')
            for r in rs:
                A(f'v_mov_b32 v6, v{r}'); A(f'v_permlane16_swap_b32 v{r}, v6'); A(f'v_add_f32 v{r}, v{r}, v6')
        red([0, 2])
        A(f'v_mul_f32 v0, {f2u(1/640)}, v0')
        A('v_mov_b32 v1, 0')
        for i in range(20): A(f'v_sub_f32 v4, v{20+i}, v0'); A('v_fmac_f32 v1, v4, v4')
        red([1])
        A(f'v_mov_b32 v4, {f2u(1e-5)}'); A(f'v_fmac_f32 v4, {f2u(1/640)}, v1'); A('v_rsq_f32 v1, v4')
        A(f'v_mul_f32 v2, {f2u(-1.4426950408889634)}, v2'); A('v_exp_f32 v2, v2'); A('v_add_f32 v2, 1.0, v2'); A('v_rcp_f32 v2, v2')
        A('v_mov_b32 v3, 0')
        A('v_lshrrev_b32 v4, 5, v127'); A('v_lshlrev_b32 v4, 4, v4')
        A(f's_lshl_b32 {T0}, {SOX}, 4'); A(f's_add_u32 {T0}, {T0}, {STATS}')
        A(['s_mov_b32 exec_lo, 1', 's_mov_b32 exec_hi, 1', f'buffer_store_dwordx4 v[0:3], v4, {WS}, {T0} offen sc1', 's_mov_b64 exec, -1'])
        return o
    def early_flags(g, ut):
        a = g.a
        a('s_waitcnt vmcnt(0)')
        g.check(7, lambda: g.dbg_ld(7, 126))
        a(f's_lshl_b32 {T0}, {SOX}, 1\ns_add_u32 {T0}, {T0}, {SF}')
        g.set_flag(7, 126, T0)
        if ut:
            D = g.lab('nout')
            a(f'''s_cmp_ge_u32 {FSLOT}, 10
            s_cbranch_scc1 {D}
            s_lshl_b32 {T0}, {CH}, 2
            s_add_u32 {T0}, {T0}, {W4}
            s_lshl_b32 {T0}, {T0}, 4
            s_add_u32 {T0}, {T0}, {RB}
            s_lshl_b32 {T0}, {T0}, 2
            s_add_u32 {T0}, {T0}, {UF}''')
            g.set_flag(7, 126, T0)
            a(f'{D}:')
    def kgen_batch(g, b):
        o = []; A = o.append
        L2E = 1.4426950408889634
        un = (lambda d, s: f'v_lshlrev_b32 v{d}, 16, v{s}') if b == 0 else (lambda d, s: f'v_and_b32 v{d}, 0xffff0000, v{s}')
        A(un(0, 40)); o += g.exp_bf16(0, 1, 2)
        A('v_mul_f32 v0, v0, v44'); A(f'v_mul_f32 v0, {f2u(-L2E)}, v0')
        A(un(1, 41)); A('v_mul_f32 v1, v1, v44'); A(f'v_mul_f32 v1, {f2u(0.15915494309189535)}, v1')
        Z = {1: 4, 8: 8, 256: 12}
        for p, z in Z.items():
            A(f'v_mul_f32 v2, {f2u(p)}, v0'); A(f'v_mul_f32 v3, {f2u(p)}, v1'); A('v_exp_f32 v2, v2'); A('v_fract_f32 v3, v3')
            A(f'v_cos_f32 v{z}, v3'); A(f'v_sin_f32 v{z+1}, v3'); A(f'v_mul_f32 v{z}, v{z}, v2'); A(f'v_mul_f32 v{z+1}, v{z+1}, v2')
            A(f'v_sub_f32 v{z+2}, 0, v{z+1}')
        k = [0]
        def put(row, r):
            t = 2 + (k[0] & 1); k[0] += 1
            A(f'v_cvt_pk_bf16_f32 v{t}, v{r}, v{r+1}'); A(f'ds_write_b32 v45, v{t} offset:{row*272}')
        def cmul(d, x, z, conj):
            yi, nyi = (z+2, z+1) if conj else (z+1, z+2)
            A(f'v_mul_f32 v{d}, v{x}, v{z}'); A(f'v_mul_f32 v{d+1}, v{x}, v{yi}')
            A(f'v_fmac_f32 v{d}, v{x+1}, v{nyi}'); A(f'v_fmac_f32 v{d+1}, v{x+1}, v{z}')
        Wj = lambda j: 16+2*j
        A(un(16, 42)); A(un(17, 43)); A('v_mul_f32 v16, v16, v44'); A('v_mul_f32 v17, v17, v44')
        A('v_mul_f32 v16, 2.0, v16'); A('v_mul_f32 v17, -2.0, v17')
        put(0, 16)
        for j in range(1, 9):
            cmul(Wj(j), Wj(j-1), 4, True)
            if j < 8: put(j, Wj(j))
        cur = {j: Wj(j) for j in (0, 2, 4, 6, 8)}; alt = {0: Wj(1), 2: Wj(3), 4: Wj(5), 6: Wj(7), 8: 34}
        row = 8
        for js in [(0, 2, 4, 6, 8), (0, 4, 8), (0, 4, 8), (0, 8), (0, 8), (0, 8), (0, 8)]:
            for j in js:
                cmul(alt[j], cur[j], 12, True); cur[j], alt[j] = alt[j], cur[j]
                put(row, cur[j]); row += 1
        assert row == 27
        A('v_mov_b32 v0, 0x3f80'); A(f'ds_write_b32 v45, v0 offset:{27*272}')
        put(28, 8)
        x = 8
        for h in range(2, 32):
            d = 16 + 2*(h & 1); cmul(d, x, 8, False); put(27+h, d); x = d
        return o
    def exp_bf16(g, r, t, u):
        hi = struct.unpack('<f', struct.pack('<f', 1.4426950408889634))[0]
        return [f'v_mul_f32 v{t}, {f2u(hi)}, v{r}', f's_mov_b32 {T4}, {f2u(hi)}', f'v_fma_f32 v{u}, v{r}, {T4}, -v{t}',
                f'v_fmac_f32 v{u}, {f2u(1.4426950408889634-hi)}, v{r}', f'v_exp_f32 v{t}, v{t}', f'v_mul_f32 v{u}, {f2u(0.6931471805599453)}, v{u}',
                f'v_fmac_f32 v{t}, v{t}, v{u}', f'v_cvt_pk_bf16_f32 v{t}, v{t}, v{t}', f'v_lshlrev_b32 v{r}, 16, v{t}']
    def kgen_mma(g, b):
        o = ['s_waitcnt lgkmcnt(0)']
        for ks in range(8):
            o.append((f'ds_read_b128 a[{8*ks}:{8*ks+3}], v46 offset:{32*ks}', 'k%d' % ks))
            o.append((f'ds_read_b128 a[{8*ks+4}:{8*ks+7}], v47 offset:{32*ks}', 'k%d' % ks))
        o2 = []
        for ks in range(8):
            o2.append([('WL', 'k%d' % ks), f'v_mfma_f32_32x32x16_bf16 v[64:79], a[{8*ks}:{8*ks+3}], a[{8*ks+4}:{8*ks+7}], {"0" if (b == 0 and ks == 0) else "v[64:79]"}'])
        return o, o2
    def aux(g):
        a = g.a; L = 127
        a('L_aux:')
        a.vm = []; a.lg = []
        a(f'''s_getpc_b64 s[50:51]
        L_pc:
        s_sub_u32 s50, s50, L_pc-{KN}
        s_subb_u32 s51, s51, 0
        s_lshl_b32 {T0}, {J}, 2
        s_add_u32 {T0}, {T0}, {W4}
        s_lshl_b32 {T0}, {T0}, 8
        v_lshl_add_u32 v0, v{L}, 2, {T0}
        v_min_u32 v0, L_end-{KN}, v0
        global_load_dword v60, v0, s[50:51]''')
        a(f'''s_lshl_b32 {SOX}, {RB}, 4
        s_add_u32 {SOX}, {SOX}, {SLOT16}
        s_lshl_b32 {SOX}, {SOX}, 2
        s_add_u32 {SOX}, {SOX}, {W4}
        s_lshl_b32 {SOX}, {SOX}, 1
        v_lshrrev_b32 v50, 5, v{L}
        v_add_u32 v50, {SOX}, v50
        v_mul_u32_u24 v50, 1280, v50
        v_and_b32 v51, 31, v{L}
        v_lshlrev_b32 v51, 3, v51
        v_add_u32 v50, v50, v51
        s_mul_i32 {SOW}, {XCD}, 20
        s_add_u32 {SOW}, {SOW}, {J}
        s_sub_u32 {SOW}, {SOW}, 8
        s_lshl_b32 {SOW}, {SOW}, 2
        s_add_u32 {SOW}, {SOW}, {W4}
        s_sub_u32 {T1}, {S8}, 2
        s_cmp_lt_u32 {T1}, 5
        s_cselect_b32 {SOW}, {SOW}, 0
        s_lshl_b32 {T0}, {SOW}, 8
        v_lshl_add_u32 v52, v{L}, 2, {T0}
        s_lshl_b32 {T0}, {SOW}, 1
        v_mov_b32 v53, {T0}
        v_mov_b32 v126, 0
        s_waitcnt lgkmcnt(0)''')
        g.srd(44, 34, WSREC)
        a(f's_cmp_lg_u32 s2, 0\ns_cbranch_scc1 L_noinit\ns_cmp_lg_u32 s3, 7\ns_cbranch_scc1 L_noinit')
        a(f'v_mov_b32 v0, 0\nv_mov_b32 v1, 0\nv_mov_b32 v2, 0\nv_mov_b32 v3, 0\nv_lshlrev_b32 v4, 4, v{L}')
        for q in range(16):
            a(f's_movk_i32 {T0}, {4096*(q//4)}\nbuffer_store_dwordx4 v[0:3], v4, {WS}, {T0} offen offset:{1024*(q%4)} sc0 sc1')
        a('s_waitcnt vmcnt(0)\nv_mov_b32 v0, 1\ns_mov_b64 exec, 1\nglobal_store_dword v1, v0, s[32:33] sc0 sc1\ns_mov_b64 exec, -1\nL_noinit:')
        for i in range(5): a(f'global_load_dwordx2 v[{2*i}:{2*i+1}], v50, s[4:5] offset:{256*i}', 'x')
        for i in range(5): a(f'global_load_dwordx2 v[{10+2*i}:{11+2*i}], v51, s[28:29] offset:{256*i}', 'x')
        a(f's_cmp_eq_u32 {S8}, 7\ns_cbranch_scc1 L_auxfree')
        for i in range(4): a(f'global_load_dword v{40+i}, v52, s[{6+2*i}:{7+2*i}]', 'x')
        a('global_load_ushort v44, v53, s[14:15]\nglobal_load_ushort v48, v53, s[16:17]', 'x')
        a(f'''v_bfe_u32 v54, v{L}, 2, 2
        v_lshrrev_b32 v55, 4, v{L}
        v_bfe_u32 v56, v{L}, 1, 1
        s_lshl_b32 {T0}, {W4}, 1
        v_add_u32 v56, {T0}, v56
        v_lshlrev_b32 v57, 1, v54
        v_xor_b32 v56, v56, v57
        v_lshlrev_b32 v56, 4, v56
        v_and_b32 v57, 1, v{L}
        v_lshl_add_u32 v56, v57, 3, v56
        v_lshl_add_u32 v56, v54, 9, v56
        v_lshl_add_u32 v56, v55, 12, v56
        v_xor_b32 v57, 16, v56
        v_and_b32 v58, 3, v{L}
        v_lshlrev_b32 v58, 4, v58
        v_lshl_add_u32 v58, v55, 6, v58
        v_lshl_add_u32 v58, v54, 14, v58
        s_lshl_b32 {T0}, {CH}, 2
        s_add_u32 {T0}, {T0}, {W4}
        s_lshl_b32 {T0}, {T0}, 6
        s_add_u32 {T0}, {T0}, {RB}
        s_lshl_b32 {T0}, {T0}, 10
        s_add_u32 {T0}, {T0}, {UT}
        s_barrier''')
        g.ts(1)
        a(f's_cmp_ge_u32 {FSLOT}, 10\ns_cbranch_scc1 L_nout')
        for rho in range(4):
            for e in range(2): a(f'ds_read_b64_tr_b16 v[{64+4*rho+2*e}:{65+4*rho+2*e}], v{56+(rho>>1)} offset:{2048*e+128*rho}', 'u%d' % rho)
        sv = list(a.vm)
        for rho in range(4):
            a.wl('u%d' % rho)
            a(f'buffer_store_dwordx4 v[{64+4*rho}:{67+4*rho}], v58, {WS}, {T0} offen offset:{256*rho} sc1')
        a('s_waitcnt vmcnt(4)\ns_branch L_utd\nL_nout:\ns_waitcnt vmcnt(0)\nL_utd:')
        st = g.stats_code()
        n1 = 70
        for x in st[:n1]: a(x)
        a('s_barrier')
        for x in st[n1:]: a(x)
        g.dbg_ld(7, 126)
        a(f's_cmp_lt_u32 {T1}, 5\ns_cbranch_scc1 L_conv')
        a('s_barrier\ns_barrier\ns_barrier')
        g.early_flags(True)
        g.ts_out()
        a('s_endpgm')
        a('L_auxfree:\ns_waitcnt vmcnt(0)')
        for x in st: a(x if isinstance(x, list) else x)
        g.dbg_ld(7, 126)
        g.early_flags(False)
        g.w2prep()
        g.ts_out()
        a('s_endpgm')
        a('L_conv:\ns_barrier')
        seq = []
        A = seq.append
        UB, US = 4352, 1152
        seq += f'''s_lshl_b32 {T2}, {W4}, 14
        s_add_u32 {T2}, {T2}, {AUXB}
        v_lshl_add_u32 v45, v{L}, 2, {T2}
        v_lshlrev_b32 v44, 16, v44
        v_lshlrev_b32 v48, 16, v48'''.split('\n')
        seq += g.exp_bf16(44, 0, 1)
        seq += f'''v_and_b32 v0, 31, v{L}
        v_lshrrev_b32 v1, 5, v{L}
        v_lshl_add_u32 v49, v1, 4, {T2}
        v_add_u32 v2, 27, v0
        v_mul_u32_u24 v2, 272, v2
        v_add_u32 v47, v2, v49
        v_lshrrev_b32 v2, 2, v0
        v_add_u32 v2, -1, v2
        v_min_i32 v2, 5, v2
        v_cmp_gt_u32 vcc, 12, v0
        v_cndmask_b32 v2, v2, v126, vcc
        v_sub_u32 v2, v0, v2
        v_mul_u32_u24 v2, 272, v2
        v_add_u32 v46, v2, v49'''.split('\n')
        seq += g.kgen_batch(0)
        r, m = g.kgen_mma(0); seq += r + m
        kb1 = g.kgen_batch(1)
        seq += kb1[:200]
        A(('UFLD',))
        seq += kb1[200:]
        r, m = g.kgen_mma(1); seq += r
        A('s_waitcnt lgkmcnt(0)')
        A(('UFCK',))
        seq += m
        nb = 2; cnt = 0
        for x in seq:
            if x == ('UFLD',):
                a(f'''s_lshr_b32 {T0}, {SOW}, 4
                s_lshl_b32 {T0}, {T0}, 6
                s_add_u32 {T0}, {T0}, {UF}
                v_and_b32 v51, 15, v{L}
                v_lshl_add_u32 v51, v51, 2, {T0}''')
                g.flag_ld(50, 51); continue
            if x == ('UFCK',):
                while nb < 10: a('s_barrier'); nb += 1
                g.ts(2)
                a('s_waitcnt vmcnt(0)')
                g.check(50, lambda: g.flag_ld(50, 51))
                g.ts(3)
                a(f'''s_lshr_b32 {T0}, {SOW}, 2
                s_lshl_b32 {T0}, {T0}, 14
                s_add_u32 {T0}, {T0}, {UT}
                v_lshrrev_b32 v50, 2, v{L}
                v_and_b32 v51, 3, v{L}
                v_lshlrev_b32 v50, 10, v50
                v_lshl_add_u32 v50, v51, 6, v50
                s_lshl_b32 {T3}, {W4}, 4
                v_add_u32 v50, {T3}, v50''')
                for rho in range(4):
                    a(f's_add_u32 m0, {T2}, {UB+128+(US-256)*rho}\nbuffer_load_dwordx4 v50, {WS}, {T0} offen offset:{256*rho} sc1 lds', 'u')
                continue
            a([x] if isinstance(x, tuple) else x); cnt += 1
            if cnt >= g.o['nbar_seg'] and nb < 10:
                a('s_barrier'); nb += 1; cnt = 0
                if nb == 4: g.early_flags(True)
        a(f'''v_and_b32 v0, 31, v{L}
        v_lshrrev_b32 v1, 5, v{L}
        v_lshl_add_u32 v0, v0, 4, {T2}
        v_lshl_add_u32 v2, v1, 3, v0
        v_lshl_add_u32 v3, v1, 9, v0
        v_lshl_add_u32 v4, v1, 10, v0
        v_and_b32 v5, 15, v{L}
        v_lshl_add_u32 v5, v5, 3, {T2}
        v_lshrrev_b32 v6, 4, v{L}
        v_mul_u32_u24 v7, {US}, v6
        v_add_u32 v7, v7, v5
        v_mov_b32 v8, 0
        v_mov_b32 v9, 0
        ds_write_b64 v7, v[8:9] offset:{UB}
        ds_write_b64 v5, v[8:9]
        v_lshl_add_u32 v40, v6, 4, v5
        v_cmp_eq_u32 vcc, 0, v{L}
        v_cndmask_b32 v48, v126, v48, vcc
        v_and_b32 v1, 1, v{L}
        v_cmp_eq_u32 vcc, 0, v1
        v_add_f32 v64, v64, v48''')
        pk = lambda d, x, y: a(f'v_cvt_pk_bf16_f32 v{d}, v{64+x}, v{64+y}')
        pk(8, 0, 1); pk(9, 2, 3); a('ds_write_b64 v2, v[8:9] offset:32')
        pk(10, 4, 4); pk(11, 5, 6); a(f'ds_write_b64 v2, v[10:11] offset:{32+512}')
        pk(12, 8, 8); pk(13, 8, 9); pk(14, 9, 9); pk(15, 10, 10); a(f'ds_write_b128 v3, v[12:15] offset:{32+1024}')
        for q in range(2):
            x = 12+2*q; d = 16+4*q
            a(f'v_cndmask_b32 v71, v{64+x+1}, v{64+x}, vcc')
            pk(d, x, x); pk(d+1, x, x); pk(d+2, 7, x+1); pk(d+3, x+1, x+1)
            a(f'ds_write_b128 v4, v[{d}:{d+3}] offset:{32+2048+512*q}')
        a(f'''v_bfe_u32 v0, v{L}, 2, 2
        v_and_b32 v1, 3, v{L}
        v_sub_u32 v1, v1, v0
        v_lshlrev_b32 v0, 3, v6
        v_sub_u32 v1, v1, v0
        v_add_u32 v1, 28, v1
        v_lshl_add_u32 v41, v1, 3, {T2}
        s_waitcnt lgkmcnt(0)''')
        for n in range(16):
            for e in range(2): a(f'ds_read_b64_tr_b16 a[{4*n+2*e}:{4*n+2*e+1}], v41 offset:{256*n+32-32*e}')
        a('s_waitcnt vmcnt(0)')
        g.ts(4)
        acc = lambda rho, t: vr(64+32*rho+4*t, 4, 'a') if rho < 2 else vr(48+32*(rho-2)+4*t, 4)
        steps = [(rho, mm) for rho in range(4) for mm in range(-1, 15)]
        def uread(i):
            rho, mm = steps[i]; b = 4*(i % 6)
            return [(f'ds_read_b64 v[{b+2*e}:{b+2*e+1}], v40 offset:{UB+8+US*rho+64*(mm+1)+8*e}', 'U%d' % i) for e in range(2)]
        for i in range(5): a(uread(i))
        for i, (rho, mm) in enumerate(steps):
            a.wl('U%d' % i)
            first = True
            for t in range(max(0, (mm+1)//2), 8):
                n = 2*t - mm
                a(f'v_mfma_f32_16x16x32_bf16 {acc(rho,t)}, a[{4*n}:{4*n+3}], {vr(4*(i%6),4)}, {"0" if mm == -1 else acc(rho,t)}')
                if first and i+5 < len(steps): a(uread(i+5))
                first = False
        g.ts(5)
        a(f'''v_and_b32 v0, 15, v{L}
        v_lshrrev_b32 v1, 4, v{L}
        v_bfe_u32 v2, v{L}, 1, 2
        v_xor_b32 v1, v1, v2
        v_lshl_add_u32 v0, v0, 2, v1
        v_lshl_add_u32 v40, v0, 4, {T2}''')
        for i, dl in enumerate((0, 1, -1)):
            a(f'''v_lshl_add_u32 v0, v{L}, 1, {dl}
            v_bfe_u32 v1, v0, 3, 2
            v_xor_b32 v0, v0, v1
            v_lshl_add_u32 v{41+i}, v0, 4, {T2}''')
        for t in range(8):
            b = 16*(t & 1); p2 = 48+4*t; p3 = 80+4*t
            for i in range(4): a(f'v_accvgpr_read_b32 v{b+i}, a{64+4*t+i}\nv_accvgpr_read_b32 v{b+4+i}, a{96+4*t+i}')
            for i in range(1, 4): a(f'v_add_f32 v{b+i}, v{b+i}, v{b+4+i-1}')
            for i in range(2, 4): a(f'v_add_f32 v{b+i}, v{b+i}, v{p2+i-2}')
            a(f'''v_add_f32 v{b+3}, v{b+3}, v{p3}
            ds_write_b128 v40, v[{b}:{b+3}] offset:{1024*t}
            v_add_f32 v{b+8}, v{b+7}, v{p2+2}
            v_add_f32 v{b+9}, v{p2+3}, v{p3+2}
            v_add_f32 v{b+8}, v{b+8}, v{p3+1}
            v_mov_b32 v{b+10}, v{p3+3}
            ds_write_b128 v40, v[{b+8}:{b+11}] offset:{8192+1024*t}''')
        a(f'''s_lshl_b32 {T0}, {SOW}, 12
        s_add_u32 {T0}, {T0}, {YOFF}
        v_lshlrev_b32 v44, 4, v{L}
        v_cmp_eq_u32 vcc, 0, v{L}
        s_waitcnt lgkmcnt(0)''')
        for k in range(4):
            b = 48+16*k
            a(f'''ds_read_b128 v[{b}:{b+3}], v41 offset:{2048*k}
            ds_read_b128 v[{b+4}:{b+7}], v42 offset:{2048*k}
            ds_read_b128 v[{b+8}:{b+11}], v43 offset:{8192+2048*k}
            ds_read_b128 v[{b+12}:{b+15}], v41 offset:{8192+2048*k}''', 'y%d' % k)
        for k in range(4):
            b = 48+16*k
            a.wl('y%d' % k)
            if k == 0:
                for i in range(3): a(f'v_cndmask_b32 v{b+8+i}, v{b+8+i}, v126, vcc')
            for h in range(2):
                for i in range(3): a(f'v_add_f32 v{b+4*h+i}, v{b+4*h+i}, v{b+8+4*h+i}')
            for i in range(4): a(f'v_cvt_pk_bf16_f32 v{b+i}, v{b+2*i}, v{b+2*i+1}')
            a(f'buffer_store_dwordx4 v[{b}:{b+3}], v44, {WS}, {T0} offen offset:{1024*k} sc1')
        g.ts(6)
        a(f'''s_mul_i32 {T0}, {XCD}, {128-80}
        s_add_u32 {T0}, {T0}, {SOW}
        s_lshl_b32 {T0}, {T0}, 2
        s_add_u32 {T0}, {T0}, {YF}
        s_waitcnt vmcnt(0)''')
        g.set_flag(0, 1, T0)
        g.ts_out()
        a('L_end:\ns_endpgm')
    def build(g):
        g.prologue(); g.gemm1(); g.gemm2(); g.free(); g.aux()
        ref = open('gated_mix__ssm_conv_s4d__mixer_channel_mlp__prompt.s.ref').read().split('\n')
        head = [l for l in ref if l.startswith(';') and '@launch' not in l]
        return '\n'.join(head) + f'''
; @launch grid=(256,1,1) block=(512,1,1) lds=163840
.amdgcn_target "amdgcn-amd-amdhsa--gfx950"
.text
.globl {KN}
.p2align 8
.type {KN},@function
{KN}:
{g.a.text()}.section .rodata,"a"
.p2align 6
.amdhsa_kernel {KN}
  .amdhsa_next_free_vgpr 256
  .amdhsa_next_free_sgpr 102
  .amdhsa_accum_offset 128
  .amdhsa_group_segment_fixed_size 0
  .amdhsa_kernarg_size 128
  .amdhsa_user_sgpr_count 2
  .amdhsa_user_sgpr_kernarg_segment_ptr 1
  .amdhsa_system_sgpr_workgroup_id_x 1
.end_amdhsa_kernel
'''
if __name__ == '__main__':
    opts = {}
    for x in sys.argv[2:]:
        k, v = x.split('='); opts[k] = int(v)
    open(sys.argv[1], 'w').write(G(**opts).build())
```
